```python
import torch

def _softmax(x, axis=-1):
    return torch.softmax(x, dim=axis)
def _gelu(x):
    return torch.nn.functional.gelu(x, approximate="tanh")
def _silu(x):
    return torch.nn.functional.silu(x)
def _sigmoid(x):
    return torch.sigmoid(x)
def _layernorm(x, axis=-1, eps=1e-5):
    m = x.mean(dim=axis, keepdim=True)
    v = x.var(dim=axis, keepdim=True, unbiased=False)
    return (x - m) / torch.sqrt(v + eps)
def _scatter_add(tgt, idx, src, axis=0):
    return tgt.clone().index_add_(axis, idx, src)
def _segment_sum(src, seg, n):
    out = torch.zeros((n,) + src.shape[1:], dtype=src.dtype)
    return out.index_add_(0, seg, src)
def _pad(x, pw):
    flat = tuple(v for pair in reversed(pw) for v in pair)
    return torch.nn.functional.pad(x, flat)

kernel_name = 'sequential_preLN__sliding_local_dilated__glu_gated_swiglu__prompt'

def setup_inputs():

    _w = (lambda a: (lambda t: t.to(torch.bfloat16) if t.is_floating_point() else t)(torch.as_tensor(a)))
    def _A_setup():
        B, S, D = 1, 2048, 512
        return {
            "x": _w((lambda *s: torch.randn(*s, dtype=torch.bfloat16) * 0.05)(B, S, D)),
            "wqkv": _w((lambda *s: torch.randn(*s, dtype=torch.bfloat16) * 0.05)(D, 3 * D)),
            "wo": _w((lambda *s: torch.randn(*s, dtype=torch.bfloat16) * 0.05)(D, D)),
        }
    _A_in = _A_setup()

    def _B_setup():
        B, S, D, F = 1, 2048, 512, 1792
        return {
            "x": _w((lambda *s: torch.randn(*s, dtype=torch.bfloat16) * 0.05)(B, S, D)),
            "w1": _w((lambda *s: torch.randn(*s, dtype=torch.bfloat16) * 0.8)(D, F) * (2.0 / D) ** 0.5),
            "w3": _w((lambda *s: torch.randn(*s, dtype=torch.bfloat16) * 0.8)(D, F) * (2.0 / D) ** 0.5),
            "w2": _w((lambda *s: torch.randn(*s, dtype=torch.bfloat16) * 0.8)(F, D) * (2.0 / F) ** 0.5),
        }
    _B_in = _B_setup()

    return {
        "A_x": _A_in["x"],
        "A_wqkv": _A_in["wqkv"],
        "A_wo": _A_in["wo"],
        "B_x": _B_in["x"],
        "B_w1": _B_in["w1"],
        "B_w3": _B_in["w3"],
        "B_w2": _B_in["w2"],
    }

def reference(A_x, A_wqkv, A_wo, B_x, B_w1, B_w3, B_w2):
    def _A_ref(x, wqkv, wo):
        B, S, D = x.shape
        H = 32; Dh = D // H
        W, dil = 8, 2
        qkv = (lambda x, *d: x.permute(*d))((x @ wqkv).reshape(B, S, 3, H, Dh), 2, 0, 3, 1, 4)
        q, k, v = qkv[0], qkv[1], qkv[2]
        scale = Dh ** -0.5
        pos = torch.arange(S)
        off = torch.arange(W) * dil
        idx = pos[:, None] - off[None, :]
        mask = idx >= 0
        idx_c = torch.where(mask, idx, 0).reshape(-1)
        kg = k[:, :, idx_c, :].reshape(B, H, S, W, Dh)
        vg = v[:, :, idx_c, :].reshape(B, H, S, W, Dh)
        logits = torch.einsum("bhsd,bhswd->bhsw", q, kg) * scale
        logits = torch.where(mask[None, None, :, :], logits, -1e9)
        attn = _softmax(logits, axis=-1)
        o = torch.einsum("bhsw,bhswd->bhsd", attn, vg)
        return (lambda x, *d: x.permute(*d))(o, 0, 2, 1, 3).reshape(B, S, D) @ wo

    def _B_ref(x, w1, w3, w2):
        gate = torch.einsum("bsd,df->bsf", x, w1)
        up = torch.einsum("bsd,df->bsf", x, w3)
        h = _silu(gate) * up
        out = torch.einsum("bsf,fd->bsd", h, w2)
        return out

    x = A_x
    h = x + _A_ref(_layernorm(x, axis=-1), A_wqkv, A_wo)
    h2 = h + _B_ref(_layernorm(h, axis=-1), B_w1, B_w3, B_w2)
    return h2
```

```python
import re

REG_RE = re.compile(r'^(-?)(abs\()?([vas])(?:(\d+)|\[(\d+):(\d+)\])\)?$')

def regs_of(tok):
    tok = tok.strip()
    if tok in ('vcc',):
        return {('s', 106), ('s', 107)}
    if tok == 'vcc_lo': return {('s', 106)}
    if tok == 'vcc_hi': return {('s', 107)}
    if tok == 'exec': return {('s', 126), ('s', 127)}
    if tok == 'm0': return {('s', 124)}
    m = REG_RE.match(tok)
    if not m:
        return set()
    f = m.group(3)
    if m.group(4) is not None:
        return {(f, int(m.group(4)))}
    return {(f, i) for i in range(int(m.group(5)), int(m.group(6)) + 1)}

TRANS = ('v_exp_f32', 'v_log_f32', 'v_rcp_f32', 'v_rsq_f32', 'v_sqrt_f32', 'v_sin_f32', 'v_cos_f32', 'v_rcp_iflag_f32')
VCC = {('s', 106), ('s', 107)}
EXEC = {('s', 126), ('s', 127)}
M0 = {('s', 124)}

class Ins:
    __slots__ = ('text', 'mn', 'ops', 'mods', 'w', 'r', 'kind', 'passes', 'srcc', 'ab', 'label', 'target', 'ws', 'storedata', 'dpp', 'comment')
    def __init__(self, text):
        self.text = text
        self.label = None; self.target = None
        self.w = set(); self.r = set(); self.kind = 'other'; self.passes = 0
        self.srcc = set(); self.ab = set(); self.ws = 1; self.storedata = set(); self.dpp = False
        t = text.split(';')[0].strip()
        if t.endswith(':'):
            self.label = t[:-1]; self.kind = 'label'; self.ws = 0; self.mn = ''; return
        if not t or t.startswith('.'):
            self.kind = 'dir'; self.ws = 0; self.mn = ''; return
        parts = t.split(None, 1)
        mn = parts[0]; self.mn = mn
        rest = parts[1] if len(parts) > 1 else ''
        ops = []; cur = ''; depth = 0
        for ch in rest:
            if ch in '[(': depth += 1
            if ch in '])': depth -= 1
            if ch == ',' and depth == 0:
                ops.append(cur.strip()); cur = ''
            else:
                cur += ch
        if cur.strip(): ops.append(cur.strip())
        mods = []
        if ops:
            last = ops[-1].split()
            ops[-1] = last[0]; mods = last[1:]
        self.ops = ops; self.mods = mods
        R = [regs_of(o) for o in ops]
        allr = lambda idx: set().union(*[R[i] for i in idx]) if idx else set()
        n = len(ops)
        if mn == 's_nop':
            self.kind = 'nop'; self.ws = int(ops[0], 0) + 1
        elif mn.startswith('v_mfma'):
            self.kind = 'mfma'
            self.passes = 8 if '32x32' in mn else 4
            self.w = R[0]; self.ab = R[1] | R[2]; self.srcc = R[3]; self.r = self.ab | self.srcc
        elif mn.startswith('v_cmp'):
            self.kind = 'valu'; self.w = R[0]; self.r = allr(range(1, n))
            if mn.startswith('v_cmpx'): self.w = self.w | EXEC
        elif mn in ('v_readfirstlane_b32', 'v_readlane_b32'):
            self.kind = 'valu'; self.w = R[0]; self.r = allr(range(1, n))
        elif mn.startswith('v_permlane') and 'swap' in mn:
            self.kind = 'valu'; self.w = R[0] | R[1]; self.r = R[0] | R[1]
        elif mn.startswith('v_'):
            self.kind = 'valu'; self.w = R[0]
            if '_co_' in mn or mn.startswith('v_div_scale') or mn.startswith('v_mad_u64'):
                self.w = R[0] | R[1]; self.r = allr(range(2, n))
            else:
                self.r = allr(range(1, n))
            if mn.startswith(('v_fmac', 'v_dot2c', 'v_mac', 'v_pk_fmac', 'v_writelane')): self.r = self.r | R[0]
            if mn.startswith('v_cndmask') and n == 3: self.r = self.r | VCC
            if '_dpp' in mn or any(m.startswith(('row_', 'quad_perm', 'wave_')) for m in mods):
                self.dpp = True; self.r = self.r | R[0]
        elif mn.startswith(('buffer_load', 'global_load', 'flat_load')):
            self.kind = 'vmem'
            if 'lds' in mods or '_lds_' in mn:
                self.r = allr(range(n)) | M0; self.kind = 'vmem_lds'
            else:
                self.w = R[0]; self.r = allr(range(1, n))
        elif mn.startswith(('buffer_store', 'buffer_atomic')):
            self.kind = 'vmem'; self.r = allr(range(n))
            if len(R[0]) >= 3: self.storedata = R[0]
            if mn.startswith('buffer_atomic') and 'sc0' in mods: self.w = R[0]
        elif mn.startswith(('global_store', 'global_atomic', 'flat_store')):
            self.kind = 'vmem'; self.r = allr(range(n))
            if mn.startswith('global_store') and len(R[1]) >= 3: self.storedata = R[1]
            if mn.startswith('global_atomic') and 'sc0' in mods:
                self.w = R[0]; self.r = allr(range(1, n))
        elif mn.startswith(('buffer_inv', 'buffer_wbl2')):
            self.kind = 'vmem'
        elif mn.startswith('ds_'):
            self.kind = 'ds'
            if mn.startswith(('ds_read', 'ds_bpermute', 'ds_permute', 'ds_swizzle')) or '_rtn' in mn:
                self.w = R[0]; self.r = allr(range(1, n))
            else:
                self.r = allr(range(n))
        elif mn.startswith(('s_load', 's_buffer_load', 's_memtime', 's_memrealtime')):
            self.kind = 'smem'; self.w = R[0]; self.r = allr(range(1, n))
        elif mn.startswith(('s_branch', 's_cbranch')):
            self.kind = 'branch'; self.target = ops[0]
            if 'vcc' in mn: self.r = set(VCC)
            if 'exec' in mn: self.r = set(EXEC)
        elif mn in ('s_endpgm',):
            self.kind = 'end'
        elif mn.startswith(('s_waitcnt', 's_barrier', 's_setprio', 's_sleep')):
            self.kind = 'sctl'
        elif mn.startswith(('s_cmp', 's_bitcmp')):
            self.kind = 'salu'; self.r = allr(range(n))
        elif mn.startswith('s_'):
            self.kind = 'salu'; self.w = R[0]; self.r = allr(range(1, n))
            if 'saveexec' in mn: self.w = self.w | EXEC; self.r = self.r | EXEC
            if mn.startswith(('s_addk', 's_mulk', 's_cmov')): self.r = self.r | R[0]
        else:
            raise ValueError('unknown instr: ' + text)

def vg(s): return {x for x in s if x[0] in 'va'}
def sg(s): return {x for x in s if x[0] == 's'}

def need(p, c):
    n = 0
    if p.kind == 'valu':
        pw = vg(p.w); ps = sg(p.w)
        isdot = p.mn.startswith('v_dot')
        if c.kind == 'mfma' and pw & c.r: n = max(n, 3 if isdot else 2)
        if c.kind == 'valu':
            if c.dpp and pw & c.r: n = max(n, 2)
            if c.mn.startswith('v_permlane') and pw & c.r: n = max(n, 2)
            if c.mn in ('v_readfirstlane_b32', 'v_readlane_b32') and pw & c.r: n = max(n, 1)
            if p.mn.split('_e')[0] in TRANS and c.mn.split('_e')[0] not in TRANS and pw & c.r: n = max(n, 1)
            if ps & sg(c.r):
                n = max(n, 4 if c.mn in ('v_readlane_b32', 'v_writelane_b32') else 2)
            if ('sdwa' in p.mn or any(m.startswith('op_sel') for m in p.mods)) and pw & (c.r | c.w): n = max(n, 1)
            if isdot:
                if c.mn == p.mn:
                    if p.mn.startswith('v_dot2c'): ab = set().union(*[regs_of(o) for o in c.ops[1:3]])
                    else: ab = set().union(*[regs_of(o) for o in c.ops[1:3]])
                    if pw & ab: n = max(n, 3)
                elif pw & (c.r | c.w): n = max(n, 3)
            if EXEC & p.w:
                if c.dpp: n = max(n, 5)
                if c.mn.startswith(('v_permlane', 'v_readlane', 'v_readfirstlane', 'v_writelane')): n = max(n, 4)
        if isdot and c.kind in ('vmem', 'vmem_lds', 'ds') and pw & (c.r | c.w): n = max(n, 3)
        if c.kind in ('vmem', 'vmem_lds') and ps & sg(c.r): n = max(n, 5)
        if c.kind == 'mfma' and EXEC & p.w: n = max(n, 4)
        if c.kind == 'branch' and ps & c.r: n = max(n, 5)
        if c.kind in ('salu', 'smem') and ps & c.r: n = max(n, 1)
    if p.kind == 'mfma':
        big = {4: 8, 8: 12}[p.passes]
        if c.kind == 'mfma':
            if p.w & c.ab: n = max(n, big)
            if p.w & c.srcc:
                if not (p.w == c.srcc and p.passes == c.passes): n = max(n, {4: 6, 8: 10}[p.passes])
            elif p.w & c.w: n = max(n, big)
        elif c.kind in ('valu', 'vmem', 'vmem_lds', 'ds'):
            if p.w & (c.r | c.w): n = max(n, big)
            if p.srcc & vg(c.w): n = max(n, {4: 3, 8: 7}[p.passes])
    if p.kind == 'salu' and M0 & p.w and c.kind == 'vmem_lds': n = max(n, 1)
    if p.storedata and c.kind != 'label' and p.storedata & vg(c.w): n = max(n, 2)
    return n

class Asm:
    def __init__(self):
        self.ins = []
        self.uid = 0
    def __call__(self, text):
        for line in text.split('\n'):
            line = line.strip()
            if line: self.ins.append(Ins(line))
        return self
    def label(self, name): self(name + ':')
    def newlabel(self, base='L'):
        self.uid += 1; return f'{base}_{self.uid}'
    def fix_hazards(self, maxd=14):
        total = 0
        ins = self.ins
        def maps():
            lab = {i.label: k for k, i in enumerate(ins) if i.kind == 'label'}
            preds = {}
            for k, i in enumerate(ins):
                if i.kind == 'branch' and i.target in lab:
                    preds.setdefault(lab[i.target], []).append(k)
            return preds
        def back(k, preds):
            seen = set()
            stack = [(k, 0)]
            while stack:
                k, dist = stack.pop()
                ps = []
                if k - 1 >= 0:
                    pi = ins[k - 1]
                    if not (pi.kind == 'end' or (pi.kind == 'branch' and pi.mn == 's_branch')):
                        ps.append(k - 1)
                if ins[k].kind == 'label':
                    ps += preds.get(k, [])
                for q in ps:
                    if (q, dist) in seen: continue
                    seen.add((q, dist))
                    yield ins[q], dist
                    nd = dist + ins[q].ws
                    if nd < maxd: stack.append((q, nd))
        changed = True
        while changed:
            changed = False
            preds = maps()
            k = 0
            while k < len(ins):
                c = ins[k]
                if c.kind in ('label', 'dir', 'nop', 'sctl', 'end'):
                    k += 1; continue
                add = 0
                for p, dist in back(k, preds):
                    if p.kind in ('valu', 'mfma', 'salu', 'vmem'):
                        nn = need(p, c)
                        if nn > dist: add = max(add, nn - dist)
                if add:
                    ins.insert(k, Ins(f's_nop {add - 1} ; auto')); changed = True; total += add
                    preds = maps()
                    k += 1
                k += 1
        return total
    def text(self):
        o = []
        for i in self.ins:
            o.append(i.text if i.kind in ('label', 'dir') else '    ' + i.text)
        return '\n'.join(o) + '\n'

def v(n, cnt=1): return f'v{n}' if cnt == 1 else f'v[{n}:{n + cnt - 1}]'
def a(n, cnt=1): return f'a{n}' if cnt == 1 else f'a[{n}:{n + cnt - 1}]'
def s(n, cnt=1): return f's{n}' if cnt == 1 else f's[{n}:{n + cnt - 1}]'

class Alloc:
    def __init__(self, start=0, limit=256): self.n = start; self.limit = limit; self.hi = start
    def __call__(self, cnt=1, align=None):
        if align is None: align = 1 if cnt == 1 else 2
        self.n = (self.n + align - 1) // align * align
        r = self.n; self.n += cnt
        assert self.n <= self.limit, f'out of registers {self.n}'
        self.hi = max(self.hi, self.n)
        return r
    def mark(self): return self.n
    def release(self, m): self.n = m
```

```python
import sys
from asmlib import *

NAME = 'sequential_preLN__sliding_local_dilated__glu_gated_swiglu__prompt'
WS_O = 0
WS_H = 2 << 20
WS_HH = 4 << 20
WS_ST = 12 << 20
ONES = 0x3F803F80
NEG = 0xF149F2CA
LOG2E = 1.4426950408889634
import struct
def f2u(x): return struct.unpack('<I', struct.pack('<f', x))[0]

def srd(A, d, plo, size, off=0):
    if off:
        A(f's_add_u32 s{d}, s{plo}, {off:#x}')
        A(f's_addc_u32 s{d+1}, s{plo+1}, 0')
        A(f's_and_b32 s{d+1}, s{d+1}, 0xffff')
    else:
        A(f's_mov_b32 s{d}, s{plo}')
        A(f's_and_b32 s{d+1}, s{plo+1}, 0xffff')
    A(f's_mov_b32 s{d+2}, {size:#x}')
    A(f's_mov_b32 s{d+3}, 0x20000')

def header(A, name):
    A(f'.globl {name}')
    A('.p2align 8')
    A(f'.type {name},@function')
    A(f'{name}:')

def descriptor(name, nv, accoff, ns=102):
    return f""".amdhsa_kernel {name}
  .amdhsa_next_free_vgpr {nv}
  .amdhsa_next_free_sgpr {ns}
  .amdhsa_accum_offset {accoff}
  .amdhsa_group_segment_fixed_size 0
  .amdhsa_kernarg_size 80
  .amdhsa_user_sgpr_count 2
  .amdhsa_user_sgpr_kernarg_segment_ptr 1
  .amdhsa_system_sgpr_workgroup_id_x 1
.end_amdhsa_kernel
"""

def log2(x):
    r = x.bit_length() - 1
    assert 1 << r == x
    return r

def decode_32x8(A, sT, sJ, XM, XN, t0, t1):
    pm, pn = 32 // XM, 8 // XN
    A(f's_and_b32 s{t0}, s2, 7')
    A(f's_lshr_b32 s{t1}, s2, 3')
    A(f's_lshr_b32 s{sT}, s{t0}, {log2(XN)}')
    A(f's_lshl_b32 s{sT}, s{sT}, {log2(pm)}')
    A(f's_lshr_b32 s{sJ}, s{t1}, {log2(pn)}')
    A(f's_add_u32 s{sT}, s{sT}, s{sJ}')
    A(f's_and_b32 s{sJ}, s{t0}, {XN - 1}')
    A(f's_lshl_b32 s{sJ}, s{sJ}, {log2(pn)}')
    A(f's_and_b32 s{t1}, s{t1}, {pn - 1}')
    A(f's_add_u32 s{sJ}, s{sJ}, s{t1}')

def rowbase(A, sR, sT, t0):
    A(f's_lshr_b32 s{sR}, s{sT}, 1')
    A(f's_lshl_b32 s{sR}, s{sR}, 17')
    A(f's_and_b32 s{t0}, s{sT}, 1')
    A(f's_lshl_b32 s{t0}, s{t0}, 10')
    A(f's_add_u32 s{sR}, s{sR}, s{t0}')

def k1(cfg):
    A = Asm(); name = 'k1_kernel'
    header(A, name)
    SX, SW, SO = 8, 12, 16
    sW, sT, sJ, sRB = 30, 31, 32, 33
    sMW, sMX, sWo, sXo, sC, sOne, sT0, sT1, sSB, sXo2, sWo2, sNeg0, sSc = range(34, 47)
    HALO = 131072; STAT = 147456; LDS = STAT + 640
    V = Alloc(1)
    vL = V(); vt = V(); vg_ = V(); vtmp = V(); vtmp2 = V(); vtmp3 = V()
    vOW = V(); vOX = V(); vOH = V()
    vWa = V(); vX0 = V(); vX1 = V(); vS0 = V(); vS1 = V(); vH0 = V(); vH1 = V()
    vst = V(4)
    mcur = V(4, 4); mprev = V(4, 4); mprev0 = V(4, 4)
    accQ = [V(4, 4) for _ in range(5)]
    accK = [V(4, 4) for _ in range(5)]
    accV = [V(4, 4) for _ in range(5)]
    sets = []
    mark_sets = V.mark()
    for _ in range(2):
        sets.append(dict(x=[V(4, 4) for _ in range(5)], xs=V(4, 4), w=[V(4, 4) for _ in range(3)]))
    A('s_cmp_ge_u32 s2, 256')
    A('s_cbranch_scc1 K1_END')
    A('s_load_dwordx4 s[4:7], s[0:1], 0')
    A('s_load_dwordx2 s[28:29], s[0:1], 72')
    A(f'v_and_b32 v{vL}, 63, v0')
    A(f'v_lshrrev_b32 v{vtmp}, 6, v0')
    A(f'v_readfirstlane_b32 s{sW}, v{vtmp}')
    decode_32x8(A, sT, sJ, cfg['k1_xm'], cfg['k1_xn'], sT0, sT1)
    rowbase(A, sRB, sT, sT0)
    r8, p_ = vtmp, vtmp2
    A(f'v_lshrrev_b32 v{r8}, 3, v{vL}')
    A(f'v_and_b32 v{p_}, 7, v{vL}')
    A(f's_and_b32 s{sT0}, s{sW}, 1')
    A(f's_lshl_b32 s{sT0}, s{sT0}, 2')
    A(f'v_and_b32 v{vtmp3}, 2, v{r8}')
    A(f'v_or_b32 v{vtmp3}, s{sT0}, v{vtmp3}')
    A(f'v_xor_b32 v{vtmp3}, v{vtmp3}, v{p_}')
    A(f'v_lshlrev_b32 v{vOW}, 4, v{vtmp3}')
    A(f'v_mul_u32_u24 v{vtmp3}, 3072, v{r8}')
    A(f'v_add_u32 v{vOW}, v{vOW}, v{vtmp3}')
    A(f's_mul_i32 s{sT1}, s{sW}, 24576')
    A(f's_lshl_b32 s{sC}, s{sJ}, 7')
    A(f's_add_u32 s{sT1}, s{sT1}, s{sC}')
    A(f'v_add_u32 v{vOW}, s{sT1}, v{vOW}')
    A(f'v_lshrrev_b32 v{vtmp3}, 1, v{r8}')
    A(f'v_xor_b32 v{vtmp3}, v{vtmp3}, v{p_}')
    A(f'v_xor_b32 v{vOX}, s{sT0}, v{vtmp3}')
    A(f'v_lshlrev_b32 v{vOX}, 4, v{vOX}')
    A(f'v_lshl_add_u32 v{vOX}, v{r8}, 11, v{vOX}')
    A(f's_lshl_b32 s{sT1}, s{sW}, 14')
    A(f'v_add_u32 v{vOX}, s{sT1}, v{vOX}')
    A(f'v_xor_b32 v{vOH}, 4, v{vtmp3}')
    A(f'v_lshlrev_b32 v{vOH}, 4, v{vOH}')
    A(f'v_lshl_add_u32 v{vOH}, v{r8}, 11, v{vOH}')
    A(f's_sub_u32 s{sT1}, s{sRB}, 16384')
    A(f'v_add_u32 v{vOH}, s{sT1}, v{vOH}')
    A('s_waitcnt lgkmcnt(0)')
    srd(A, SX, 4, 2048 * 1024)
    srd(A, SW, 6, 512 * 3072)
    A(f's_lshl_b32 s{sT0}, s{sW}, 12')
    A(f's_add_u32 m0, s{sT0}, {HALO + 1024}')
    A(f's_lshl_b32 s{sT1}, s{sW}, 8')
    A(f'buffer_load_dwordx4 v{vOH}, s[{SX}:{SX+3}], s{sT1} offen lds')
    A(f's_add_u32 m0, s{sT0}, {HALO + 1024 + 2048}')
    A(f's_add_u32 s{sT1}, s{sT1}, 128')
    A(f'buffer_load_dwordx4 v{vOH}, s[{SX}:{SX+3}], s{sT1} offen lds')
    A(f's_mul_i32 s{sMW}, s{sW}, 3072')
    A(f's_lshl_b32 s{sMX}, s{sW}, 10')
    A(f's_add_u32 s{sMX}, s{sMX}, 24576')
    A(f's_mov_b32 s{sSB}, 0')
    A(f's_mov_b32 s{sWo}, 0')
    A(f's_mov_b32 s{sXo}, s{sRB}')
    def issue_chunk():
        A(f's_add_u32 m0, s{sSB}, s{sMW}')
        A(f's_add_u32 s{sWo2}, s{sWo}, 98304')
        for m in range(3):
            A(f'buffer_load_dwordx4 v{vOW}, s[{SW}:{SW+3}], s{sWo} offen offset:{m*1024} lds')
        A(f's_add_u32 m0, m0, 12288')
        A(f's_add_u32 s{sXo2}, s{sXo}, 65536')
        for m in range(3):
            A(f'buffer_load_dwordx4 v{vOW}, s[{SW}:{SW+3}], s{sWo2} offen offset:{m*1024} lds')
        A(f's_add_u32 m0, s{sSB}, s{sMX}')
        A(f's_add_u32 s{sWo}, s{sWo}, 196608')
        A(f'buffer_load_dwordx4 v{vOX}, s[{SX}:{SX+3}], s{sXo} offen lds')
        A(f's_add_u32 m0, m0, 4096')
        A(f's_add_u32 s{sSB}, s{sSB}, 32768')
        A(f'buffer_load_dwordx4 v{vOX}, s[{SX}:{SX+3}], s{sXo2} offen lds')
        A(f's_and_b32 s{sSB}, s{sSB}, 0x1ffff')
        A(f's_add_u32 s{sXo}, s{sXo}, 128')
    A(f's_mov_b32 s{sC}, 0')
    A('K1_PRO:')
    issue_chunk()
    A(f's_add_u32 s{sC}, s{sC}, 1')
    A(f's_cmp_lt_u32 s{sC}, 4')
    A('s_cbranch_scc1 K1_PRO')
    srd(A, SO, 28, 2 << 20, WS_O)
    o4 = sets[0]['x'][0]
    A(f's_mov_b32 s{sOne}, {ONES:#x}')
    for i in range(4): A(f'v_mov_b32 v{o4+i}, s{sOne}')
    A(f'v_lshlrev_b32 v{vtmp3}, 4, v{vL}')
    A(f's_lshl_b32 s{sT0}, s{sW}, 12')
    A(f's_add_u32 s{sT0}, s{sT0}, {HALO}')
    A(f'v_add_u32 v{vtmp3}, s{sT0}, v{vtmp3}')
    A(f'ds_write_b128 v{vtmp3}, v[{o4}:{o4+3}]')
    A(f'ds_write_b128 v{vtmp3}, v[{o4}:{o4+3}] offset:2048')
    A(f'v_and_b32 v{vt}, 15, v{vL}')
    A(f'v_lshrrev_b32 v{vg_}, 4, v{vL}')
    A(f'v_bfe_u32 v{vtmp}, v{vL}, 3, 2')
    A(f'v_xor_b32 v{vtmp}, s{sW}, v{vtmp}')
    A(f'v_lshlrev_b32 v{vWa}, 5, v{vtmp}')
    A(f'v_mul_u32_u24 v{vtmp}, 3072, v{vg_}')
    A(f'v_add_u32 v{vWa}, v{vWa}, v{vtmp}')
    A(f'v_bfe_u32 v{vtmp}, v{vL}, 2, 2')
    A(f'v_lshl_add_u32 v{vWa}, v{vtmp}, 7, v{vWa}')
    A(f'v_and_b32 v{vtmp}, 3, v{vL}')
    A(f'v_lshl_add_u32 v{vWa}, v{vtmp}, 3, v{vWa}')
    A(f'v_lshrrev_b32 v{vtmp}, 1, v{vt}')
    A(f'v_xor_b32 v{vtmp}, v{vtmp}, v{vg_}')
    A(f'v_lshlrev_b32 v{vX0}, 4, v{vtmp}')
    A(f'v_lshl_add_u32 v{vX0}, v{vt}, 7, v{vX0}')
    A(f'v_xor_b32 v{vX1}, 64, v{vX0}')
    A(f's_lshl_b32 s{sT0}, s{sW}, 11')
    A(f'v_add_u32 v{vS0}, s{sT0}, v{vX0}')
    A(f'v_add_u32 v{vS1}, s{sT0}, v{vX1}')
    A(f'v_add_u32 v{vH0}, {HALO}, v{vX0}')
    A(f'v_add_u32 v{vH1}, {HALO}, v{vX1}')
    A(f's_mov_b32 s{sNeg0}, {NEG:#x}')
    A(f'v_mov_b32 v{vtmp2}, s{sNeg0}')
    A(f'v_lshlrev_b32 v{vtmp}, 2, v{vg_}')
    A(f'v_sub_u32 v{vtmp}, v{vt}, v{vtmp}')
    for r in range(4):
        A(f'v_subrev_u32 v{vtmp3}, {r}, v{vtmp}')
        A(f'v_cmp_gt_u32 vcc, 8, v{vtmp3}')
        A(f'v_cndmask_b32 v{mcur+r}, v{vtmp2}, 0, vcc')
        A(f'v_cmp_gt_i32 vcc, -8, v{vtmp3}')
        A(f'v_cndmask_b32 v{mprev+r}, v{vtmp2}, 0, vcc')
    A(f's_cmp_lt_u32 s{sT}, 2')
    A(f's_cselect_b32 s{sNeg0}, s{sNeg0}, 0')
    for r in range(4):
        A(f'v_min_f32 v{mprev0+r}, s{sNeg0}, v{mprev+r}')
    for base in accQ + accK + accV + [vst] + sets[1]['x'] + [sets[1]['xs']] + sets[1]['w']:
        for i in range(4): A(f'v_mov_b32 v{base+i}, 0')
    A(f's_mov_b32 s{sC}, 0')

    def reads(st, ks):
        xa = vX1 if ks else vX0; sa = vS1 if ks else vS0; ha = vH1 if ks else vH0
        L = []
        for m in range(3):
            for h in range(2):
                L.append(f'ds_read_b64_tr_b16 v[{st["w"][m]+2*h}:{st["w"][m]+2*h+1}], v{vWa} offset:{ks*12288 + m*1024 + h*512}')
        for b in range(4):
            L.append(f'ds_read_b128 v[{st["x"][b+1]}:{st["x"][b+1]+3}], v{xa} offset:{24576 + b*2048}')
        L.append(f'ds_read_b128 v[{st["x"][0]}:{st["x"][0]+3}], v{ha}')
        L.append(f'ds_read_b128 v[{st["xs"]}:{st["xs"]+3}], v{sa} offset:24576')
        return L
    def mfmas(st):
        L = []
        for b in [1, 2, 3, 4, 0]:
            x = v(st['x'][b], 4)
            L.append(f'v_mfma_f32_16x16x32_bf16 {v(accQ[b],4)}, {v(st["w"][0],4)}, {x}, {v(accQ[b],4)}')
            L.append(f'v_mfma_f32_16x16x32_bf16 {v(accK[b],4)}, {v(st["w"][1],4)}, {x}, {v(accK[b],4)}')
            L.append(f'v_mfma_f32_16x16x32_bf16 {v(accV[b],4)}, {x}, {v(st["w"][2],4)}, {v(accV[b],4)}')
        return L
    def dots(st):
        L = []
        for i in range(4):
            L.append(f'v_dot2c_f32_bf16 v{vst}, s{sOne}, v{st["xs"]+i}')
            L.append(f'v_dot2c_f32_bf16 v{vst+1}, v{st["xs"]+i}, v{st["xs"]+i}')
            L.append(f'v_dot2c_f32_bf16 v{vst+2}, s{sOne}, v{st["x"][0]+i}')
            L.append(f'v_dot2c_f32_bf16 v{vst+3}, v{st["x"][0]+i}, v{st["x"][0]+i}')
        return L
    def interleave(M, R, D):
        for i, m in enumerate(M):
            A(m)
            if i < len(R): A(R[i])
            if i < len(D): A(D[i])
        for x in R[len(M):] + D[len(M):]: A(x)

    A('s_waitcnt vmcnt(24) lgkmcnt(0)')
    A('s_barrier')
    A('s_branch K1_BODY')
    A('K1_LOOP:')
    A('s_waitcnt vmcnt(16) lgkmcnt(0)')
    A('s_barrier')
    A(f's_cmp_lt_u32 s{sC}, 5')
    A(f's_cselect_b32 s{sXo}, s{sXo}, 0x80000000')
    issue_chunk()
    A('K1_BODY:')
    interleave(mfmas(sets[1]), reads(sets[0], 0), dots(sets[1]))
    A('s_waitcnt lgkmcnt(0)')
    interleave(mfmas(sets[0]), reads(sets[1], 1), dots(sets[0]))
    for r in (vWa, vX0, vX1, vS0, vS1):
        A(f'v_add_u32 v{r}, 32768, v{r}')
        A(f'v_and_b32 v{r}, 0x1ffff, v{r}')
    A(f'v_add_u32 v{vH0}, 2048, v{vH0}')
    A(f'v_add_u32 v{vH1}, 2048, v{vH1}')
    A(f's_add_u32 s{sC}, s{sC}, 1')
    A(f's_cmp_lt_u32 s{sC}, 8')
    A('s_cbranch_scc1 K1_LOOP')
    A('s_waitcnt lgkmcnt(0)')
    interleave(mfmas(sets[1]), [], dots(sets[1]))
    s1w, s2w, s1h, s2h = vst, vst+1, vst+2, vst+3
    A(f'v_permlane32_swap_b32 v{s1w}, v{s2w}')
    A(f'v_permlane32_swap_b32 v{s1h}, v{s2h}')
    A(f'v_add_f32 v{s1w}, v{s1w}, v{s2w}')
    A(f'v_add_f32 v{s1h}, v{s1h}, v{s2h}')
    A(f'v_permlane16_swap_b32 v{s1w}, v{s1h}')
    A(f'v_add_f32 v{s1w}, v{s1w}, v{s1h}')
    A(f'v_mov_b32 v{s2w}, v{s1w}')
    A(f'v_permlane32_swap_b32 v{s2w}, v{s1w}')
    S1, S2 = s2w, s1w
    A(f'v_mul_f32 v{S1}, {f2u(1/512):#x}, v{S1}')
    A(f'v_mul_f32 v{S2}, {f2u(1/512):#x}, v{S2}')
    A(f'v_fma_f32 v{S2}, -v{S1}, v{S1}, v{S2}')
    A(f'v_max_f32 v{S2}, 0, v{S2}')
    A(f'v_add_f32 v{S2}, {f2u(1e-5):#x}, v{S2}')
    A(f'v_rsq_f32 v{S2}, v{S2}')
    A(f's_add_u32 s{sT0}, s{sW}, 1')
    A(f's_lshl_b32 s{sT0}, s{sT0}, 6')
    A(f'v_mov_b32 v{vtmp}, s{sT0}')
    A(f'v_and_b32 v{vtmp2}, 1, v{vg_}')
    A(f'v_cmp_eq_u32 vcc, 0, v{vtmp2}')
    A(f'v_cndmask_b32 v{vtmp}, 0, v{vtmp}, vcc')
    A(f'v_lshlrev_b32 v{vtmp2}, 2, v{vt}')
    A(f'v_add_u32 v{vtmp2}, {STAT}, v{vtmp2}')
    A(f'v_add_u32 v{vtmp}, v{vtmp}, v{vtmp2}')
    A(f'ds_write2_b32 v{vtmp}, v{S1}, v{S2} offset0:0 offset1:80')
    A(f'v_lshlrev_b32 v{vtmp3}, 4, v{vg_}')
    A(f'v_add_u32 v{vtmp3}, {STAT}, v{vtmp3}')
    V.release(mark_sets)
    csq = V(4, 4); csk = V(4, 4); csv = V(2, 2)
    for r in range(4):
        A(f'v_mov_b32_dpp v{csq+r}, v{accQ[0]+r} row_newbcast:0 row_mask:0xf bank_mask:0xf')
        A(f'v_mov_b32_dpp v{csk+r}, v{accK[0]+r} row_newbcast:0 row_mask:0xf bank_mask:0xf')
    A(f'v_mov_b32 v{csv}, v{accV[0]}')
    A(f'v_mov_b32 v{csv+1}, v{accV[0]}')
    A(f'v_permlane32_swap_b32 v{csv}, v{csv+1}')
    A('s_waitcnt lgkmcnt(0)')
    A('s_barrier')
    mr = [V(2, 2) for _ in range(5)]
    mv = [V(4, 4) for _ in range(5)]; rv = [V(4, 4) for _ in range(5)]
    for b in range(5):
        A(f'ds_read2_b32 v[{mr[b]}:{mr[b]+1}], v{vtmp2} offset0:{b*16} offset1:{b*16+80}')
    for b in range(5):
        A(f'ds_read_b128 v[{mv[b]}:{mv[b]+3}], v{vtmp3} offset:{b*64}')
        A(f'ds_read_b128 v[{rv[b]}:{rv[b]+3}], v{vtmp3} offset:{b*64+320}')
    qp = [None] + [V(2, 2) for _ in range(4)]
    kp = [V(2, 2) for _ in range(5)]
    vp0 = V(10, 2); vp = [vp0 + 2*b for b in range(5)]
    A('s_waitcnt lgkmcnt(10)')
    def norm_t(acc, cs, m):
        for h in range(2):
            A(f'v_pk_fma_f32 {v(acc+2*h,2)}, {v(cs+2*h,2)}, {v(m,2)}, {v(acc+2*h,2)} op_sel:[0,0,0] op_sel_hi:[1,0,1] neg_lo:[0,1,0] neg_hi:[0,1,0]')
    def scale_t(acc, m):
        for h in range(2):
            A(f'v_pk_mul_f32 {v(acc+2*h,2)}, {v(acc+2*h,2)}, {v(m,2)} op_sel:[0,1] op_sel_hi:[1,1]')
    def cvt(dst, acc):
        for h in range(2):
            A(f'v_cvt_pk_bf16_f32 v{dst+h}, v{acc+2*h}, v{acc+2*h+1}')
    for b in range(5):
        norm_t(accK[b], csk, mr[b])
        if b: norm_t(accQ[b], csq, mr[b])
    for b in range(5):
        scale_t(accK[b], mr[b])
        if b: scale_t(accQ[b], mr[b])
    for b in range(5):
        cvt(kp[b], accK[b])
        if b: cvt(qp[b], accQ[b])
    Sp = [None] + [V(4, 4) for _ in range(4)]; Sc = [None] + [V(4, 4) for _ in range(4)]
    for b in range(1, 5):
        mp = mprev0 if b == 1 else mprev
        A(f'v_mfma_f32_16x16x16_bf16 {v(Sp[b],4)}, {v(kp[b-1],2)}, {v(qp[b],2)}, {v(mp,4)}')
        A(f'v_mfma_f32_16x16x16_bf16 {v(Sc[b],4)}, {v(kp[b],2)}, {v(qp[b],2)}, {v(mcur,4)}')
    A('s_waitcnt lgkmcnt(0)')
    for b in range(5):
        for h in range(2):
            A(f'v_pk_fma_f32 {v(accV[b]+2*h,2)}, {v(mv[b]+2*h,2)}, {v(csv,2)}, {v(accV[b]+2*h,2)} op_sel:[0,0,0] op_sel_hi:[1,0,1] neg_lo:[1,0,0] neg_hi:[1,0,0]')
    for b in range(5):
        for h in range(2):
            A(f'v_pk_mul_f32 {v(accV[b]+2*h,2)}, {v(accV[b]+2*h,2)}, {v(rv[b]+2*h,2)}')
    for b in range(5):
        cvt(vp[b], accV[b])
    mx = [None] + [V(2, 2) for _ in range(4)]
    for b in range(1, 5): A(f'v_max3_f32 v{mx[b]}, v{Sp[b]}, v{Sp[b]+1}, v{Sp[b]+2}')
    for b in range(1, 5): A(f'v_max3_f32 v{mx[b]}, v{mx[b]}, v{Sp[b]+3}, v{Sc[b]}')
    for b in range(1, 5): A(f'v_max3_f32 v{mx[b]}, v{mx[b]}, v{Sc[b]+1}, v{Sc[b]+2}')
    for b in range(1, 5): A(f'v_max_f32 v{mx[b]}, v{mx[b]}, v{Sc[b]+3}')
    a_, b_, c_, d_ = mx[1], mx[2], mx[3], mx[4]
    A(f'v_permlane32_swap_b32 v{a_}, v{b_}')
    A(f'v_permlane32_swap_b32 v{c_}, v{d_}')
    A(f'v_max_f32 v{a_}, v{a_}, v{b_}')
    A(f'v_max_f32 v{c_}, v{c_}, v{d_}')
    A(f'v_permlane16_swap_b32 v{a_}, v{c_}')
    A(f'v_max_f32 v{a_}, v{a_}, v{c_}')
    A(f's_mov_b32 s{sSc}, {f2u(0.25*LOG2E):#x}')
    A(f'v_mul_f32 v{a_}, s{sSc}, v{a_}')
    A(f'v_mov_b32 v{c_}, v{a_}')
    A(f'v_permlane16_swap_b32 v{a_}, v{c_}')
    A(f'v_mov_b32 v{b_}, v{a_}')
    A(f'v_mov_b32 v{d_}, v{c_}')
    A(f'v_permlane32_swap_b32 v{a_}, v{b_}')
    A(f'v_permlane32_swap_b32 v{c_}, v{d_}')
    vsc = V(2, 2)
    A(f'v_mov_b32 v{vsc}, s{sSc}')
    for b in range(1, 5):
        for S in (Sp[b], Sc[b]):
            for h in range(2):
                A(f'v_pk_fma_f32 {v(S+2*h,2)}, {v(S+2*h,2)}, {v(vsc,2)}, {v(mx[b],2)} op_sel:[0,0,0] op_sel_hi:[1,0,0] neg_lo:[0,0,1] neg_hi:[0,0,1]')
    for b in range(1, 5):
        for S in (Sp[b], Sc[b]):
            for r in range(4): A(f'v_exp_f32 v{S+r}, v{S+r}')
    P = [None] + [V(4, 4) for _ in range(4)]
    ones4 = V(4, 4)
    for i in range(4): A(f'v_mov_b32 v{ones4+i}, s{sOne}')
    for b in range(1, 5):
        cvt(P[b], Sp[b]); cvt(P[b]+2, Sc[b])
    O = Sp; Ls = Sc
    for b in range(1, 5):
        A(f'v_mfma_f32_16x16x32_bf16 {v(Ls[b],4)}, {v(ones4,4)}, {v(P[b],4)}, 0')
        A(f'v_mfma_f32_16x16x32_bf16 {v(O[b],4)}, {v(vp[b-1],4)}, {v(P[b],4)}, 0')
    A(f's_lshl_b32 s{sT0}, s{sT}, 16')
    A(f's_lshl_b32 s{sT1}, s{sJ}, 2')
    A(f's_add_u32 s{sT1}, s{sT1}, s{sW}')
    A(f's_lshl_b32 s{sT1}, s{sT1}, 10')
    A(f's_add_u32 s{sT0}, s{sT0}, s{sT1}')
    A(f's_add_u32 s{sT1}, s{sT0}, 32768')
    A(f'v_lshlrev_b32 v{vtmp}, 4, v{vL}')
    for b in range(1, 5): A(f'v_rcp_f32 v{Ls[b]}, v{Ls[b]}')
    for b in range(1, 5):
        for h in range(2):
            A(f'v_pk_mul_f32 {v(O[b]+2*h,2)}, {v(O[b]+2*h,2)}, {v(Ls[b],2)} op_sel:[0,0] op_sel_hi:[1,0]')
    for i in range(2):
        cvt(P[1+i], O[1+2*i]); cvt(P[1+i]+2, O[2+2*i])
    for i in range(2):
        A(f'v_permlane16_swap_b32 v{P[1+i]}, v{P[1+i]+2}')
        A(f'v_permlane16_swap_b32 v{P[1+i]+1}, v{P[1+i]+3}')
    A(f'buffer_store_dwordx4 {v(P[1],4)}, v{vtmp}, s[{SO}:{SO+3}], s{sT0} offen')
    A(f'buffer_store_dwordx4 {v(P[2],4)}, v{vtmp}, s[{SO}:{SO+3}], s{sT1} offen')
    A('K1_END:')
    A('s_endpgm')
    nv = (V.hi + 7) // 8 * 8
    return A, name, (256, 256, LDS), descriptor(name, nv, nv)

def tile64_addr(A, vL, sW, sMb, sKh, vTr, vtmp, vtmp2, khstride):
    A(f'v_bfe_u32 v{vtmp}, v{vL}, 3, 1')
    A(f'v_xor_b32 v{vtmp}, s{sKh}, v{vtmp}')
    A(f'v_lshlrev_b32 v{vTr}, 6, v{vtmp}')
    A(f'v_bfe_u32 v{vtmp}, v{vL}, 4, 1')
    A(f'v_lshl_add_u32 v{vTr}, v{vtmp}, 5, v{vTr}')
    A(f'v_and_b32 v{vtmp}, 1, v{vL}')
    A(f'v_lshl_add_u32 v{vTr}, v{vtmp}, 4, v{vTr}')
    A(f'v_bfe_u32 v{vtmp}, v{vL}, 1, 1')
    A(f'v_lshl_add_u32 v{vTr}, v{vtmp}, 3, v{vTr}')
    A(f'v_bfe_u32 v{vtmp}, v{vL}, 2, 2')
    A(f'v_lshl_add_u32 v{vTr}, v{vtmp}, 7, v{vTr}')
    A(f'v_lshrrev_b32 v{vtmp}, 5, v{vL}')
    A(f'v_lshl_add_u32 v{vTr}, v{vtmp}, 10, v{vTr}')
    A(f'v_mul_u32_u24 v{vtmp}, s{sKh}, v{vtmp2}') if False else None
    A(f's_mul_i32 s{sMb+2}, s{sKh}, {khstride}')
    A(f'v_add_u32 v{vTr}, s{sMb+2}, v{vTr}')
    A(f'v_xor_b32 v{vTr+1}, 64, v{vTr}')

def unpack_to_acc(A, acc, src):
    for e in range(8):
        A(f'v_lshlrev_b32 v{acc+2*e}, 16, v{src+e}')
        A(f'v_and_b32 v{acc+2*e+1}, 0xffff0000, v{src+e}')

def exchange(A, acc0, acc1, tmp16, vL, sW, vtmp, vtmp2, EX, sT0):
    A(f's_lshl_b32 s{sT0}, s{sW}, 12')
    A(f's_add_u32 s{sT0}, s{sT0}, {EX}')
    A(f'v_lshlrev_b32 v{vtmp}, 4, v{vL}')
    A(f'v_add_u32 v{vtmp}, s{sT0}, v{vtmp}')
    A(f'v_xor_b32 v{vtmp2}, 8192, v{vtmp}')
    for i in range(4):
        A(f'ds_write_b128 v{vtmp}, {v(acc1+4*i,4)} offset:{i*1024}')
    A('s_waitcnt lgkmcnt(0)')
    A('s_barrier')
    for i in range(4):
        A(f'ds_read_b128 {v(tmp16+4*i,4)}, v{vtmp2} offset:{i*1024}')
    for i in range(4):
        A(f's_waitcnt lgkmcnt({3-i})')
        for h in range(2):
            A(f'v_pk_add_f32 {v(acc0+4*i+2*h,2)}, {v(acc0+4*i+2*h,2)}, {v(tmp16+4*i+2*h,2)}')

def k2(cfg):
    A = Asm(); name = 'k2_kernel'
    header(A, name)
    SX, SWO, SOF, SHF, SST = 8, 12, 16, 20, 24
    sW, sT, sJ, sRB, sMb, sKh, sT2, sT0, sT1, sOne, sAo, sWo = range(32, 44)
    EX = 65536; LDS = EX + 16384
    assert EX % 16384 == 0
    V = Alloc(1)
    vL = V(); vtmp = V(); vtmp2 = V(); vA = V(); vW = V(4); vTr = V(2); vXo = V()
    acc0 = V(16, 4); acc1 = V(16, 4)
    af = [V(4, 4) for _ in range(16)]
    wf = [V(4, 4) for _ in range(8)]
    xr = V(8, 4)
    A('s_cmp_ge_u32 s2, 256')
    A('s_cbranch_scc1 K2_END')
    A('s_load_dwordx2 s[4:5], s[0:1], 0')
    A('s_load_dwordx2 s[6:7], s[0:1], 16')
    A('s_load_dwordx2 s[28:29], s[0:1], 72')
    A(f'v_and_b32 v{vL}, 63, v0')
    A(f'v_lshrrev_b32 v{vtmp}, 6, v0')
    A(f'v_readfirstlane_b32 s{sW}, v{vtmp}')
    decode_32x8(A, sT, sJ, cfg['k2_xm'], cfg['k2_xn'], sT0, sT1)
    rowbase(A, sRB, sT, sT0)
    A(f's_and_b32 s{sMb}, s{sW}, 1')
    A(f's_lshr_b32 s{sKh}, s{sW}, 1')
    A(f'v_lshrrev_b32 v{vtmp}, 3, v{vL}')
    A(f'v_and_b32 v{vtmp2}, 2, v{vtmp}')
    A(f'v_lshlrev_b32 v{vtmp2}, 1, v{vtmp2}')
    A(f'v_and_b32 v{vW}, 7, v{vL}')
    A(f'v_xor_b32 v{vW}, v{vW}, v{vtmp2}')
    A(f'v_lshlrev_b32 v{vW}, 4, v{vW}')
    A(f'v_lshl_add_u32 v{vW}, v{vtmp}, 10, v{vW}')
    A(f's_lshl_b32 s{sT0}, s{sKh}, 18')
    A(f's_lshl_b32 s{sT1}, s{sMb}, 15')
    A(f's_add_u32 s{sT0}, s{sT0}, s{sT1}')
    A(f's_lshl_b32 s{sT1}, s{sJ}, 7')
    A(f's_add_u32 s{sT0}, s{sT0}, s{sT1}')
    A(f'v_add_u32 v{vW}, s{sT0}, v{vW}')
    for i in range(1, 4): A(f'v_add_u32 v{vW+i}, {i*7168}, v{vW}')
    A(f'v_lshlrev_b32 v{vA}, 4, v{vL}')
    A(f'v_and_b32 v{vtmp}, 31, v{vL}')
    A(f'v_lshlrev_b32 v{vXo}, 11, v{vtmp}')
    A(f'v_lshrrev_b32 v{vtmp}, 5, v{vL}')
    A(f'v_lshl_add_u32 v{vXo}, v{vtmp}, 4, v{vXo}')
    A(f's_lshl_b32 s{sT0}, s{sMb}, 16')
    A(f's_add_u32 s{sT0}, s{sT0}, s{sRB}')
    A(f's_add_u32 s{sT0}, s{sT0}, s{sT1}')
    A(f's_lshl_b32 s{sT1}, s{sKh}, 6')
    A(f's_add_u32 s{sT0}, s{sT0}, s{sT1}')
    A(f's_lshl_b32 s{sAo}, s{sT}, 1')
    A(f's_add_u32 s{sAo}, s{sAo}, s{sMb}')
    A(f's_lshl_b32 s{sT2}, s{sAo}, 15')
    A(f's_lshl_b32 s{sT1}, s{sKh}, 14')
    A(f's_add_u32 s{sAo}, s{sT2}, s{sT1}')
    A(f's_lshl_b32 s{sT1}, s{sKh}, 15')
    A(f's_lshl_b32 s{sWo}, s{sMb}, 12')
    A(f's_add_u32 m0, s{sT1}, s{sWo}')
    A(f's_mov_b32 s{sWo}, 0')
    A('s_waitcnt lgkmcnt(0)')
    srd(A, SWO, 6, 512 * 1024)
    srd(A, SOF, 28, 2 << 20, WS_O)
    for sub in range(4):
        for i in range(4):
            A(f'buffer_load_dwordx4 v{vW+i}, s[{SWO}:{SWO+3}], s{sWo} offen offset:{i*1024} lds')
        for i in range(4):
            A(f'buffer_load_dwordx4 {v(af[sub*4+i],4)}, v{vA}, s[{SOF}:{SOF+3}], s{sAo} offen offset:{i*1024}')
        if sub == 0:
            srd(A, SX, 4, 2048 * 1024)
            for i in range(2):
                A(f'buffer_load_dwordx4 {v(xr+4*i,4)}, v{vXo}, s[{SX}:{SX+3}], s{sT0} offen offset:{i*32}')
        if sub < 3:
            A(f's_add_u32 m0, m0, 8192')
            A(f's_add_u32 s{sWo}, s{sWo}, 65536')
            A(f's_add_u32 s{sAo}, s{sAo}, 4096')
    srd(A, SHF, 28, 2 << 20, WS_H)
    srd(A, SST, 28, 1 << 20, WS_ST)
    tile64_addr(A, vL, sW, sAo, sKh, vTr, vtmp, vtmp2, 32768)
    for i in range(16): A(f'v_mov_b32 v{acc1+i}, 0')
    A(f's_mov_b32 s{sOne}, {ONES:#x}')
    A('s_waitcnt vmcnt(24)')
    unpack_to_acc(A, acc0, xr)
    for sub in range(4):
        if sub: A(f's_waitcnt vmcnt({8*(3-sub)})')
        A('s_barrier')
        for st in range(4):
            for lc in range(2):
                for h in range(2):
                    r = wf[st*2+lc] + 2*h
                    A(f'ds_read_b64_tr_b16 {v(r,2)}, v{vTr+lc} offset:{(sub*4+st)*2048 + h*512}')
        for st in range(4):
            for lc in range(2):
                A(f's_waitcnt lgkmcnt({14 - 2*(st*2+lc)})')
                acc = acc1 if lc else acc0
                A(f'v_mfma_f32_32x32x16_bf16 {v(acc,16)}, {v(wf[st*2+lc],4)}, {v(af[sub*4+st],4)}, {v(acc,16)}')
    exchange(A, acc0, acc1, wf[0], vL, sW, vtmp, vtmp2, EX, sT0)
    pk = af[0]
    assert af[1] == af[0] + 4
    for e in range(8):
        A(f'v_cvt_pk_bf16_f32 v{pk+e}, v{acc0+2*e}, v{acc0+2*e+1}')
    A(f's_lshl_b32 s{sT0}, s{sJ}, 12')
    A(f's_add_u32 s{sT0}, s{sT0}, s{sT2}')
    A(f's_lshl_b32 s{sT1}, s{sKh}, 11')
    A(f's_add_u32 s{sT0}, s{sT0}, s{sT1}')
    for i in range(2):
        A(f'buffer_store_dwordx4 {v(pk+4*i,4)}, v{vA}, s[{SHF}:{SHF+3}], s{sT0} offen offset:{i*1024}')
    s1, s2 = acc1, acc1 + 1
    A(f'v_mov_b32 v{s1}, 0')
    A(f'v_mov_b32 v{s2}, 0')
    for e in range(8):
        A(f'v_dot2c_f32_bf16 v{s1}, s{sOne}, v{pk+e}')
        A(f'v_dot2c_f32_bf16 v{s2}, v{pk+e}, v{pk+e}')
    A(f'v_permlane32_swap_b32 v{s1}, v{s2}')
    A(f'v_add_f32 v{s1}, v{s1}, v{s2}')
    A(f's_lshr_b32 s{sT0}, s{sT2}, 3')
    A(f's_lshr_b32 s{sT1}, s{sJ}, 1')
    A(f's_lshl_b32 s{sT1}, s{sT1}, 10')
    A(f's_add_u32 s{sT0}, s{sT0}, s{sT1}')
    A(f's_and_b32 s{sT1}, s{sJ}, 1')
    A(f's_lshl_b32 s{sT1}, s{sT1}, 1')
    A(f's_add_u32 s{sT1}, s{sT1}, s{sKh}')
    A(f's_lshl_b32 s{sT1}, s{sT1}, 2')
    A(f's_add_u32 s{sT0}, s{sT0}, s{sT1}')
    A(f'buffer_store_dword v{s1}, v{vA}, s[{SST}:{SST+3}], s{sT0} offen')
    A('K2_END:')
    A('s_endpgm')
    nv = (V.hi + 7) // 8 * 8
    return A, name, (256, 256, LDS), descriptor(name, nv, nv)

def k3(cfg):
    A = Asm(); name = 'k3_kernel'
    header(A, name)
    SG, SU, SHF, SHH, SST = 8, 12, 16, 20, 24
    sW, sM, sJ, sTb, sT0, sT1, sOne, sAo, sWo, sW4, sM0 = range(32, 43)
    CS = 131072; LDS = CS + 512
    V = Alloc(1, 128)
    vL = V(); vtmp = V(); vtmp2 = V(); vA = V(); vG = V(); vU = V(); vTr = V(4); vcs = V()
    mean = V(2, 2); rl = V(2, 2)
    acc = [V(16, 4) for _ in range(4)]
    wf = [[V(4, 4) for _ in range(4)] for _ in range(2)]
    stt = wf[0][0]
    A('s_cmp_ge_u32 s2, 224')
    A('s_cbranch_scc1 K3_END')
    A('s_load_dwordx4 s[4:7], s[0:1], 32')
    A('s_load_dwordx2 s[28:29], s[0:1], 72')
    A(f'v_and_b32 v{vL}, 63, v0')
    A(f'v_lshrrev_b32 v{vtmp}, 6, v0')
    A(f'v_readfirstlane_b32 s{sW}, v{vtmp}')
    XM, XN = cfg['k3_xm'], cfg['k3_xn']
    pm, pn = 8 // XM, 28 // XN
    A(f's_and_b32 s{sT0}, s2, 7')
    A(f's_lshr_b32 s{sT1}, s2, 3')
    magic = {28: 0, 14: 19, 7: 37}[pn]
    if magic:
        assert all((i * magic) >> 8 == i // pn for i in range(28))
        A(f's_mul_i32 s{sM}, s{sT1}, {magic}')
        A(f's_lshr_b32 s{sM}, s{sM}, 8')
    else:
        A(f's_mov_b32 s{sM}, 0')
    A(f's_mul_i32 s{sJ}, s{sM}, {pn}')
    A(f's_sub_u32 s{sJ}, s{sT1}, s{sJ}')
    A(f's_lshr_b32 s{sT1}, s{sT0}, {log2(XN)}')
    A(f's_mul_i32 s{sT1}, s{sT1}, {pm}')
    A(f's_add_u32 s{sM}, s{sM}, s{sT1}')
    A(f's_and_b32 s{sT1}, s{sT0}, {XN-1}')
    A(f's_mul_i32 s{sT1}, s{sT1}, {pn}')
    A(f's_add_u32 s{sJ}, s{sJ}, s{sT1}')
    A(f's_lshl_b32 s{sTb}, s{sM}, 3')
    A(f's_add_u32 s{sTb}, s{sTb}, s{sW}')
    A(f's_and_b32 s{sW4}, s{sW}, 3')
    A(f'v_lshrrev_b32 v{vtmp}, 3, v{vL}')
    A(f'v_and_b32 v{vtmp2}, 2, v{vtmp}')
    A(f'v_lshlrev_b32 v{vtmp2}, 1, v{vtmp2}')
    A(f'v_and_b32 v{vG}, 7, v{vL}')
    A(f'v_xor_b32 v{vG}, v{vG}, v{vtmp2}')
    A(f'v_lshlrev_b32 v{vG}, 4, v{vG}')
    A(f'v_xor_b32 v{vU}, 32, v{vG}')
    A(f'v_mul_u32_u24 v{vtmp}, 3584, v{vtmp}')
    A(f's_mul_i32 s{sT0}, s{sW}, {8*3584}')
    A(f's_lshl_b32 s{sT1}, s{sJ}, 7')
    A(f's_add_u32 s{sT0}, s{sT0}, s{sT1}')
    A(f'v_add_u32 v{vtmp}, s{sT0}, v{vtmp}')
    A(f'v_add_u32 v{vG}, v{vG}, v{vtmp}')
    A(f'v_add_u32 v{vU}, v{vU}, v{vtmp}')
    A(f'v_lshlrev_b32 v{vA}, 4, v{vL}')
    A(f's_lshl_b32 s{sAo}, s{sTb}, 15')
    A(f's_lshl_b32 s{sM0}, s{sW}, 10')
    A(f's_mov_b32 s{sWo}, 0')
    A(f's_lshl_b32 s{sT0}, s{sTb}, 12')
    A('s_waitcnt lgkmcnt(0)')
    srd(A, SG, 4, 512 * 3584)
    srd(A, SU, 6, 512 * 3584)
    srd(A, SHF, 28, 2 << 20, WS_H)
    srd(A, SST, 28, 1 << 20, WS_ST)
    for ch in range(8):
        A(f's_mov_b32 m0, s{sM0}')
        A(f'buffer_load_dwordx4 v{vG}, s[{SG}:{SG+3}], s{sWo} offen lds')
        A(f's_add_u32 m0, s{sM0}, 65536')
        A(f'buffer_load_dwordx4 v{vU}, s[{SU}:{SU+3}], s{sWo} offen lds')
        for i in range(4):
            A(f'buffer_load_dwordx4 {a((ch*4+i)*4,4)}, v{vA}, s[{SHF}:{SHF+3}], s{sAo} offen offset:{i*1024}')
        if ch == 0:
            for i in range(4):
                A(f'buffer_load_dwordx4 {v(stt+4*i,4)}, v{vA}, s[{SST}:{SST+3}], s{sT0} offen offset:{i*1024}')
        if ch < 7:
            A(f's_add_u32 s{sM0}, s{sM0}, 8192')
            A(f's_add_u32 s{sWo}, s{sWo}, {64*3584}')
            A(f's_add_u32 s{sAo}, s{sAo}, 4096')
    srd(A, SHH, 28, 7 << 20, WS_HH)
    A(f'v_bfe_u32 v{vtmp}, v{vL}, 3, 1')
    A(f'v_lshlrev_b32 v{vtmp}, 1, v{vtmp}')
    A(f'v_bfe_u32 v{vtmp2}, v{vL}, 4, 1')
    A(f'v_xor_b32 v{vtmp}, v{vtmp}, v{vtmp2}')
    A(f'v_xor_b32 v{vtmp}, s{sW4}, v{vtmp}')
    A(f'v_lshlrev_b32 v{vTr}, 5, v{vtmp}')
    A(f'v_lshl_add_u32 v{vTr}, v{vtmp2}, 16, v{vTr}')
    A(f'v_and_b32 v{vtmp}, 1, v{vL}')
    A(f'v_lshl_add_u32 v{vTr}, v{vtmp}, 4, v{vTr}')
    A(f'v_bfe_u32 v{vtmp}, v{vL}, 1, 1')
    A(f'v_lshl_add_u32 v{vTr}, v{vtmp}, 3, v{vTr}')
    A(f'v_bfe_u32 v{vtmp}, v{vL}, 2, 2')
    A(f'v_lshl_add_u32 v{vTr}, v{vtmp}, 7, v{vTr}')
    A(f'v_lshrrev_b32 v{vtmp}, 5, v{vL}')
    A(f'v_lshl_add_u32 v{vTr}, v{vtmp}, 10, v{vTr}')
    for lc in range(1, 4): A(f'v_xor_b32 v{vTr+lc}, {lc*32}, v{vTr}')
    for c in range(4):
        for i in range(16): A(f'v_mov_b32 v{acc[c]+i}, 0')
    A(f'v_mov_b32 v{vcs}, 0')
    A(f's_mov_b32 s{sOne}, {ONES:#x}')
    A('s_waitcnt vmcnt(42)')
    for i in range(4): A(f'v_pk_add_f32 {v(stt+2*i,2)}, {v(stt+2*i,2)}, {v(stt+8+2*i,2)}')
    for i in range(2): A(f'v_pk_add_f32 {v(stt+2*i,2)}, {v(stt+2*i,2)}, {v(stt+4+2*i,2)}')
    A(f'v_pk_add_f32 {v(stt,2)}, {v(stt,2)}, {v(stt+2,2)}')
    A(f'v_add_f32 v{stt}, v{stt}, v{stt+1}')
    A(f'v_mov_b32 v{mean}, v{stt}')
    A(f'v_permlane32_swap_b32 v{mean}, v{stt}')
    A(f'v_mul_f32 v{mean}, {f2u(1/512):#x}, v{mean}')
    A(f'v_mul_f32 v{stt}, {f2u(1/512):#x}, v{stt}')
    A(f'v_fma_f32 v{stt}, -v{mean}, v{mean}, v{stt}')
    A(f'v_max_f32 v{stt}, 0, v{stt}')
    A(f'v_add_f32 v{stt}, {f2u(1e-5):#x}, v{stt}')
    A(f'v_rsq_f32 v{rl}, v{stt}')
    A(f'v_rcp_f32 v{rl+1}, v{stt}')
    A(f'v_mul_f32 v{rl}, {f2u(-LOG2E):#x}, v{rl}')
    def rd(st):
        s_ = wf[st & 1]
        return [f'ds_read_b64_tr_b16 {v(s_[lc]+2*h,2)}, v{vTr+lc} offset:{st*2048 + h*512}' for lc in range(4) for h in range(2)]
    def mm(st):
        s_ = wf[st & 1]
        return [f'v_mfma_f32_32x32x16_bf16 {v(acc[lc],16)}, {v(s_[lc],4)}, {a(st*4,4)}, {v(acc[lc],16)}' for lc in range(4)]
    def dd(st):
        s_ = wf[st & 1]
        return [f'v_dot2c_f32_bf16 v{vcs}, s{sOne}, v{s_[0]+i}' for i in range(4)]
    A('s_barrier')
    for x in rd(0): A(x)
    for st in range(32):
        nxt = st + 1
        R = []
        if nxt < 32:
            if nxt % 4 == 0:
                A(f's_waitcnt vmcnt({6*(7 - nxt//4)})')
                A('s_barrier')
            R = rd(nxt)
        A('s_waitcnt lgkmcnt(0)')
        M = mm(st); D = dd(st)
        for i in range(4):
            A(M[i])
            for x in R[2*i:2*i+2]: A(x)
            A(D[i])
    A(f'v_mov_b32 v{vtmp}, v{vcs}')
    A(f'v_permlane32_swap_b32 v{vtmp}, v{vcs}')
    A(f'v_add_f32 v{vcs}, v{vcs}, v{vtmp}')
    A(f'v_and_b32 v{vtmp}, 31, v{vL}')
    A(f'v_lshlrev_b32 v{vtmp}, 2, v{vtmp}')
    A(f's_lshl_b32 s{sT0}, s{sW4}, 7')
    A(f's_add_u32 s{sT0}, s{sT0}, {CS}')
    A(f'v_add_u32 v{vtmp}, s{sT0}, v{vtmp}')
    A(f'ds_write_b32 v{vtmp}, v{vcs}')
    A(f'v_lshrrev_b32 v{vtmp2}, 5, v{vL}')
    A(f'v_lshlrev_b32 v{vtmp2}, 4, v{vtmp2}')
    A(f'v_add_u32 v{vTr}, s{sT0}, v{vtmp2}')
    for lc in range(1, 4): A(f'v_xor_b32 v{vTr+lc}, {lc*128}, v{vTr}')
    A(f's_mul_i32 s{sT0}, s{sTb}, {112*1024}')
    A(f's_lshl_b32 s{sT1}, s{sJ}, 12')
    A(f's_add_u32 s{sT0}, s{sT0}, s{sT1}')
    A('s_waitcnt lgkmcnt(0)')
    A('s_barrier')
    for lc in range(4):
        cs = wf[lc & 1][0]
        for q in range(4):
            A(f'ds_read_b128 {v(cs+4*q,4)}, v{vTr+lc} offset:{q*32}')
        ac = acc[lc]
        A('s_waitcnt lgkmcnt(0)')
        for e in range(8):
            A(f'v_pk_fma_f32 {v(ac+2*e,2)}, {v(cs+2*e,2)}, {v(mean,2)}, {v(ac+2*e,2)} op_sel:[0,0,0] op_sel_hi:[1,0,1] neg_lo:[0,1,0] neg_hi:[0,1,0]')
        t = cs
        for e in range(4):
            A(f'v_pk_mul_f32 {v(t+2*e,2)}, {v(ac+2*e,2)}, {v(rl,2)} op_sel:[0,0] op_sel_hi:[1,0]')
        for e in range(4):
            A(f'v_pk_mul_f32 {v(ac+2*e,2)}, {v(ac+2*e,2)}, {v(ac+8+2*e,2)}')
        for e in range(8): A(f'v_exp_f32 v{t+e}, v{t+e}')
        for e in range(4):
            A(f'v_pk_mul_f32 {v(ac+2*e,2)}, {v(ac+2*e,2)}, {v(rl,2)} op_sel:[0,1] op_sel_hi:[1,1]')
        for e in range(8): A(f'v_add_f32 v{t+e}, 1.0, v{t+e}')
        for e in range(8): A(f'v_rcp_f32 v{t+e}, v{t+e}')
        for e in range(4):
            A(f'v_pk_mul_f32 {v(ac+2*e,2)}, {v(ac+2*e,2)}, {v(t+2*e,2)}')
        for e in range(4):
            A(f'v_cvt_pk_bf16_f32 v{ac+8+e}, v{ac+2*e}, v{ac+2*e+1}')
        A(f's_xor_b32 s{sT1}, s{sW4}, {lc}')
        A(f's_lshl_b32 s{sT1}, s{sT1}, 10')
        A(f's_add_u32 s{sT1}, s{sT1}, s{sT0}')
        A(f'buffer_store_dwordx4 {v(ac+8,4)}, v{vA}, s[{SHH}:{SHH+3}], s{sT1} offen')
    A('K3_END:')
    A('s_endpgm')
    return A, name, (224, 512, LDS), descriptor(name, 256, 128)

def k4(cfg):
    A = Asm(); name = 'k4_kernel'
    header(A, name)
    SW2, SHH, SHF, SOUT = 8, 12, 16, 20
    sW, sT, sJ, sRB, sMb, sKh, sT2, sT0, sT1, sC, sAo, sWo, sTmpA, sM0, sIt, sOo = range(32, 48)
    NS = 7; STG = 8192
    EX = 131072; LDS = EX + 16384
    V = Alloc(1)
    vL = V(); vtmp = V(); vtmp2 = V(); vA = V(); vW = V(4); vTr = V(2); vXo = V()
    acc0 = V(16, 4); acc1 = V(16, 4)
    af = [[V(4, 4) for _ in range(4)] for _ in range(NS)]
    wf = [V(4, 4) for _ in range(8)]
    xr = V(8, 4)
    A('s_cmp_ge_u32 s2, 256')
    A('s_cbranch_scc1 K4_END')
    A('s_load_dwordx4 s[4:7], s[0:1], 48')
    A('s_load_dwordx2 s[28:29], s[0:1], 72')
    A(f'v_and_b32 v{vL}, 63, v0')
    A(f'v_lshrrev_b32 v{vtmp}, 6, v0')
    A(f'v_readfirstlane_b32 s{sW}, v{vtmp}')
    decode_32x8(A, sT, sJ, cfg['k4_xm'], cfg['k4_xn'], sT0, sT1)
    rowbase(A, sRB, sT, sT0)
    A(f's_and_b32 s{sMb}, s{sW}, 1')
    A(f's_lshr_b32 s{sKh}, s{sW}, 1')
    A(f'v_lshrrev_b32 v{vtmp}, 3, v{vL}')
    A(f'v_and_b32 v{vtmp2}, 2, v{vtmp}')
    A(f'v_lshlrev_b32 v{vtmp2}, 1, v{vtmp2}')
    A(f'v_and_b32 v{vW}, 7, v{vL}')
    A(f'v_xor_b32 v{vW}, v{vW}, v{vtmp2}')
    A(f'v_lshlrev_b32 v{vW}, 4, v{vW}')
    A(f'v_lshl_add_u32 v{vW}, v{vtmp}, 10, v{vW}')
    A(f's_mul_i32 s{sT0}, s{sKh}, {896*1024}')
    A(f's_lshl_b32 s{sT1}, s{sMb}, 15')
    A(f's_add_u32 s{sT0}, s{sT0}, s{sT1}')
    A(f's_lshl_b32 s{sT1}, s{sJ}, 7')
    A(f's_add_u32 s{sT0}, s{sT0}, s{sT1}')
    A(f'v_add_u32 v{vW}, s{sT0}, v{vW}')
    for i in range(1, 4): A(f'v_add_u32 v{vW+i}, {i*7168}, v{vW}')
    A(f'v_lshlrev_b32 v{vA}, 4, v{vL}')
    A(f'v_and_b32 v{vtmp}, 31, v{vL}')
    A(f'v_lshlrev_b32 v{vXo}, 11, v{vtmp}')
    A(f'v_lshrrev_b32 v{vtmp}, 5, v{vL}')
    A(f'v_lshl_add_u32 v{vXo}, v{vtmp}, 4, v{vXo}')
    A(f's_lshl_b32 s{sOo}, s{sMb}, 16')
    A(f's_add_u32 s{sOo}, s{sOo}, s{sRB}')
    A(f's_add_u32 s{sOo}, s{sOo}, s{sT1}')
    A(f's_lshl_b32 s{sT1}, s{sKh}, 6')
    A(f's_add_u32 s{sOo}, s{sOo}, s{sT1}')
    A(f's_lshl_b32 s{sT2}, s{sT}, 1')
    A(f's_add_u32 s{sT2}, s{sT2}, s{sMb}')
    A(f's_mul_i32 s{sAo}, s{sT2}, {112*1024}')
    A(f's_mul_i32 s{sT1}, s{sKh}, {56*1024}')
    A(f's_add_u32 s{sAo}, s{sAo}, s{sT1}')
    A(f's_lshl_b32 s{sT0}, s{sT2}, 15')
    A(f's_lshl_b32 s{sT1}, s{sJ}, 12')
    A(f's_add_u32 s{sT0}, s{sT0}, s{sT1}')
    A(f's_lshl_b32 s{sT1}, s{sKh}, 11')
    A(f's_add_u32 s{sT0}, s{sT0}, s{sT1}')
    A(f's_mul_i32 s{sM0}, s{sKh}, {NS*STG}')
    A(f's_lshl_b32 s{sT1}, s{sMb}, 12')
    A(f's_add_u32 s{sM0}, s{sM0}, s{sT1}')
    A(f's_mov_b32 s{sWo}, 0')
    A('s_waitcnt lgkmcnt(0)')
    srd(A, SW2, 4, 1792 * 1024)
    srd(A, SHH, 28, 7 << 20, WS_HH)
    def issue(stage):
        A(f's_add_u32 m0, s{sM0}, {stage*STG}')
        for i in range(4):
            A(f'buffer_load_dwordx4 v{vW+i}, s[{SW2}:{SW2+3}], s{sWo} offen offset:{i*1024} lds')
        for i in range(4):
            A(f'buffer_load_dwordx4 {v(af[stage][i],4)}, v{vA}, s[{SHH}:{SHH+3}], s{sAo} offen offset:{i*1024}')
        A(f's_add_u32 s{sWo}, s{sWo}, 65536')
        A(f's_add_u32 s{sAo}, s{sAo}, 4096')
    for c in range(NS - 1):
        issue(c)
        if c == 0:
            srd(A, SHF, 28, 2 << 20, WS_H)
            for i in range(2):
                A(f'buffer_load_dwordx4 {v(xr+4*i,4)}, v{vA}, s[{SHF}:{SHF+3}], s{sT0} offen offset:{i*1024}')
    srd(A, SOUT, 6, 2048 * 1024)
    tile64_addr(A, vL, sW, sAo, sKh, vTr, vtmp, vtmp2, NS * STG)
    for i in range(16): A(f'v_mov_b32 v{acc1+i}, 0')
    A(f's_mov_b32 s{sIt}, 0')
    A('s_waitcnt vmcnt(40)')
    unpack_to_acc(A, acc0, xr)
    A('K4_LOOP:')
    for c in range(NS):
        A('s_waitcnt vmcnt(40)')
        A('s_barrier')
        if c == 1:
            A(f's_cmp_eq_u32 s{sIt}, 0')
            A(f's_cselect_b32 s{sWo}, s{sWo}, 0x80000000')
            A(f's_cselect_b32 s{sAo}, s{sAo}, 0x80000000')
        for st in range(4):
            for lc in range(2):
                for h in range(2):
                    r = wf[st*2+lc] + 2*h
                    A(f'ds_read_b64_tr_b16 {v(r,2)}, v{vTr+lc} offset:{c*STG + st*2048 + h*512}')
        issue((c + NS - 1) % NS)
        for st in range(4):
            for lc in range(2):
                A(f's_waitcnt lgkmcnt({14 - 2*(st*2+lc)})')
                acc = acc1 if lc else acc0
                A(f'v_mfma_f32_32x32x16_bf16 {v(acc,16)}, {v(wf[st*2+lc],4)}, {v(af[c][st],4)}, {v(acc,16)}')
    A(f's_add_u32 s{sIt}, s{sIt}, 1')
    A(f's_cmp_lt_u32 s{sIt}, 2')
    A('s_cbranch_scc1 K4_LOOP')
    exchange(A, acc0, acc1, wf[0], vL, sW, vtmp, vtmp2, EX, sT0)
    pk = xr
    for e in range(8):
        A(f'v_cvt_pk_bf16_f32 v{pk+e}, v{acc0+2*e}, v{acc0+2*e+1}')
    for i in range(2):
        A(f'buffer_store_dwordx4 {v(pk+4*i,4)}, v{vXo}, s[{SOUT}:{SOUT+3}], s{sOo} offen offset:{i*32}')
    A('K4_END:')
    A('s_endpgm')
    nv = (V.hi + 7) // 8 * 8
    return A, name, (256, 256, LDS), descriptor(name, nv, nv)

DEFAULT = dict(k1_xm=4, k1_xn=2, k2_xm=8, k2_xn=1, k3_xm=8, k3_xn=1, k4_xm=8, k4_xn=1)

def build(cfg, kernels=(k1, k2, k3, k4)):
    ks = [k(cfg) for k in kernels]
    out = []
    ref = open('cdna_kernels/' + NAME + '.s.ref').read().split('\n')
    for line in ref:
        if line.startswith(';') and '@launch' not in line and 'Override launch' not in line and 'grid=ceil' not in line:
            out.append(line)
        elif not line.startswith(';'):
            break
    for A, name, (g, b, lds), d in ks:
        out.append(f'; @launch kernel={name} grid=({g},1,1) block=({b},1,1) lds={lds}')
    out.append('.amdgcn_target "amdgcn-amd-amdhsa--gfx950"')
    out.append('.text')
    for A, name, _, d in ks:
        n = A.fix_hazards()
        print(f'{name}: {len(A.ins)} lines, {n} wait states inserted', file=sys.stderr)
        out.append(A.text())
    out.append('.section .rodata,"a"')
    for A, name, _, d in ks:
        out.append('.p2align 6')
        out.append(d)
    return '\n'.join(out)

if __name__ == '__main__':
    cfg = dict(DEFAULT)
    path = 'cdna_kernels/' + NAME + '.s'
    for arg in sys.argv[1:]:
        if '=' in arg:
            k, val = arg.split('='); cfg[k] = int(val)
        else:
            path = arg
    open(path, 'w').write(build(cfg))
```
